```python
import torch

def _softmax(x, axis=-1):
    return torch.softmax(x, dim=axis)
def _gelu(x):
    return torch.nn.functional.gelu(x, approximate="tanh")
def _silu(x):
    return torch.nn.functional.silu(x)
def _sigmoid(x):
    return torch.sigmoid(x)
def _layernorm(x, axis=-1, eps=1e-5):
    m = x.mean(dim=axis, keepdim=True)
    v = x.var(dim=axis, keepdim=True, unbiased=False)
    return (x - m) / torch.sqrt(v + eps)
def _scatter_add(tgt, idx, src, axis=0):
    return tgt.clone().index_add_(axis, idx, src)
def _segment_sum(src, seg, n):
    out = torch.zeros((n,) + src.shape[1:], dtype=src.dtype)
    return out.index_add_(0, seg, src)
def _pad(x, pw):
    flat = tuple(v for pair in reversed(pw) for v in pair)
    return torch.nn.functional.pad(x, flat)

kernel_name = 'gated_mix__sliding_block__linear_kernel_hedgehog__prompt'

def setup_inputs():

    _w = (lambda a: (lambda t: t.to(torch.bfloat16) if t.is_floating_point() else t)(torch.as_tensor(a)))
    def _A_setup():
        B, S, D = 1, 2048, 576
        return {
            "x": _w((lambda *s: torch.randn(*s, dtype=torch.bfloat16) * 0.05)(B, S, D)),
            "wqkv": _w((lambda *s: torch.randn(*s, dtype=torch.bfloat16) * 0.8)(D, 3 * D)),
            "wo": _w((lambda *s: torch.randn(*s, dtype=torch.bfloat16) * 0.05)(D, D)),
        }
    _A_in = _A_setup()

    def _B_setup():
        B, S, D, H = 1, 2048, 576, 32
        Dh = D // H
        return {
            "x": _w((lambda *s: torch.randn(*s, dtype=torch.bfloat16) * 0.05)(B, S, D)),
            "wqkv": _w((lambda *s: torch.randn(*s, dtype=torch.bfloat16) * 1.6)(D, 3 * D)),
            "w_phi": _w((lambda *s: torch.randn(*s, dtype=torch.bfloat16) * 1.6)(H, Dh, Dh) * (Dh ** -0.5)),
            "wo": _w((lambda *s: torch.randn(*s, dtype=torch.bfloat16) * 0.1)(D, D)),
        }
    _B_in = _B_setup()

    return {
        "A_x": _A_in["x"],
        "A_wqkv": _A_in["wqkv"],
        "A_wo": _A_in["wo"],
        "B_x": _B_in["x"],
        "B_wqkv": _B_in["wqkv"],
        "B_w_phi": _B_in["w_phi"],
        "B_wo": _B_in["wo"],
        "gate_w": _w((lambda *s: torch.randn(*s, dtype=torch.bfloat16) * 0.05)(576) * 16.0),
    }

def reference(A_x, A_wqkv, A_wo, B_x, B_wqkv, B_w_phi, B_wo, gate_w):
    def _A_ref(x, wqkv, wo):
        B, S, D = x.shape
        H = 32; Dh = D // H; W = 256
        qkv = (lambda x, *d: x.permute(*d))((x @ wqkv).reshape(B, S, 3, H, Dh), 2, 0, 3, 1, 4)
        q, k, v = qkv[0], qkv[1], qkv[2]
        scores = torch.einsum("bhqd,bhkd->bhqk", q, k) * (Dh ** -0.5)
        idx = torch.arange(S)
        mask = (idx[:, None] - idx[None, :] >= 0) & (idx[:, None] - idx[None, :] < W)
        scores = torch.where(mask[None, None], scores, -1e9)
        p = _softmax(scores, axis=-1)
        o = torch.einsum("bhqk,bhkd->bhqd", p, v)
        return (lambda x, *d: x.permute(*d))(o, 0, 2, 1, 3).reshape(B, S, D) @ wo

    def _B_ref(x, wqkv, w_phi, wo):
        B, S, D = x.shape
        H = 32; Dh = D // H
        qkv = (lambda x, *d: x.permute(*d))((x @ wqkv).reshape(B, S, 3, H, Dh), 2, 0, 3, 1, 4)
        q, k, v = qkv[0], qkv[1], qkv[2]
        pq = torch.einsum("bhsd,hdf->bhsf", q, w_phi)
        pk = torch.einsum("bhsd,hdf->bhsf", k, w_phi)
        phi_q = torch.concatenate([_softmax(pq, axis=-1), _softmax(-pq, axis=-1)], axis=-1)
        phi_k = torch.concatenate([_softmax(pk, axis=-1), _softmax(-pk, axis=-1)], axis=-1)
        kv = torch.einsum("bhsf,bhsd->bhfd", phi_k, v)
        z  = torch.einsum("bhsf->bhf", phi_k)
        num = torch.einsum("bhqf,bhfd->bhqd", phi_q, kv)
        den = torch.einsum("bhqf,bhf->bhq", phi_q, z)[..., None] + 1e-6
        o = num / den
        return (lambda x, *d: x.permute(*d))(o, 0, 2, 1, 3).reshape(B, S, D) @ wo

    x = A_x
    g = _sigmoid((x * gate_w).sum(-1, keepdims=True))
    a = _A_ref(x, A_wqkv, A_wo)
    b = _B_ref(x, B_wqkv, B_w_phi, B_wo)
    return g * a + (1 - g) * b
```

```python
import re

TRANS = ("v_exp_f32", "v_log_f32", "v_rcp_f32", "v_rsq_f32", "v_sqrt_f32", "v_sin_f32", "v_cos_f32")
NO_DST_S = ("s_cmp", "s_waitcnt", "s_barrier", "s_branch", "s_cbranch", "s_nop", "s_sleep", "s_setprio",
            "s_endpgm", "s_bitcmp")


def regs_of(tok):
    tok = tok.strip()
    tok = re.sub(r"^-", "", tok)
    m = re.fullmatch(r"abs\((.*)\)", tok)
    if m:
        tok = m.group(1)
    m = re.fullmatch(r"\|(.*)\|", tok)
    if m:
        tok = m.group(1)
    m = re.fullmatch(r"([vsa])(\d+)", tok)
    if m:
        return {(m.group(1), int(m.group(2)))}
    m = re.fullmatch(r"([vsa])\[(\d+):(\d+)\]", tok)
    if m:
        return {(m.group(1), i) for i in range(int(m.group(2)), int(m.group(3)) + 1)}
    if tok in ("vcc", "vcc_lo", "vcc_hi"):
        return {("s", "vcc")}
    if tok in ("exec", "exec_lo", "exec_hi"):
        return {("s", "exec")}
    if tok == "m0":
        return {("s", "m0")}
    return set()


class Ins:
    __slots__ = ("text", "op", "kind", "w", "r", "srcc", "ab", "passes", "data", "ws", "dst_tok", "c_tok")


def parse(text):
    t = text.split(";")[0].strip()
    parts = t.split(None, 1)
    op = parts[0]
    rest = parts[1] if len(parts) > 1 else ""
    ops = []
    depth = 0
    cur = ""
    for ch in rest:
        if ch == "[":
            depth += 1
        if ch == "]":
            depth -= 1
        if ch == "," and depth == 0:
            ops.append(cur.strip())
            cur = ""
        else:
            cur += ch
    if cur.strip():
        ops.append(cur.strip())
    mods = ""
    if ops:
        last = ops[-1].split(None, 1)
        ops[-1] = last[0]
        if len(last) > 1:
            mods = last[1]
    I = Ins()
    I.text = text
    I.op = op
    I.w = set()
    I.r = set()
    I.srcc = set()
    I.ab = set()
    I.passes = 0
    I.data = set()
    I.ws = 1
    I.dst_tok = None
    I.c_tok = None
    R = [regs_of(o) for o in ops]
    if op.startswith("v_mfma"):
        I.kind = "mfma"
        I.w = R[0]
        I.ab = R[1] | R[2]
        I.srcc = R[3]
        I.r = I.ab | I.srcc
        I.passes = 8 if "32x32" in op else 4
        I.dst_tok = ops[0]
        I.c_tok = ops[3]
    elif op.startswith("v_"):
        I.kind = "trans" if op.replace("_e32", "").replace("_e64", "") in TRANS else "valu"
        I.w = set(R[0])
        for x in R[1:]:
            I.r |= x
        if op.startswith("v_permlane"):
            I.w |= R[1]
            I.r |= R[0]
        if op.startswith(("v_fmac", "v_dot2c", "v_pk_fmac", "v_writelane")):
            I.r |= R[0]
        if op.startswith(("v_add_co", "v_sub_co", "v_addc_co", "v_subb_co", "v_mad_u64")):
            I.w |= R[1]
            I.r -= R[1] if not op.startswith(("v_addc", "v_subb")) else set()
        if op.startswith("v_cndmask") and len(ops) == 3:
            I.r |= {("s", "vcc")}
    elif op.startswith("ds_"):
        I.kind = "ds"
        if op.startswith(("ds_read", "ds_bpermute", "ds_permute", "ds_swizzle")):
            I.w = R[0]
            for x in R[1:]:
                I.r |= x
        else:
            for x in R:
                I.r |= x
    elif op.startswith(("buffer_", "global_")):
        I.kind = "vmem"
        is_lds = " lds" in (" " + mods) or "_lds_" in op
        if "load" in op and not is_lds:
            I.w = R[0]
            for x in R[1:]:
                I.r |= x
        else:
            for x in R:
                I.r |= x
            if is_lds:
                I.r |= {("s", "m0")}
                I.kind = "dma"
            if "store" in op and ("x3" in op or "x4" in op):
                I.data = R[0] if op.startswith("buffer_") else R[1]
    elif op.startswith("s_"):
        I.kind = "salu"
        if op == "s_nop":
            I.ws = int(ops[0], 0) + 1
        if op.startswith(NO_DST_S):
            for x in R:
                I.r |= x
        else:
            I.w = set(R[0]) if R else set()
            for x in R[1:]:
                I.r |= x
            if "saveexec" in op:
                I.w |= {("s", "exec")}
    else:
        raise ValueError("unknown instruction: " + text)
    return I


def need(prev, cur):
    n = 0
    pv = prev.kind in ("valu", "trans")
    cv = cur.kind in ("valu", "trans")
    pw_v = {x for x in prev.w if x[0] in "va"}
    pw_s = {x for x in prev.w if x[0] == "s"}
    if pv and cur.kind == "mfma" and (pw_v & cur.r):
        n = max(n, 2)
    if prev.kind == "mfma":
        big = prev.passes == 8
        if cur.kind == "mfma":
            if prev.w & cur.ab:
                n = max(n, 12 if big else 8)
            if prev.w & cur.srcc:
                if not (prev.dst_tok == cur.c_tok and prev.passes == cur.passes):
                    n = max(n, 10 if big else 6)
            elif prev.w & cur.w:
                n = max(n, 10 if big else 6)
        else:
            if cur.kind != "salu" and (prev.w & (cur.r | cur.w)):
                n = max(n, 12 if big else 8)
            if cv and (prev.srcc & cur.w):
                n = max(n, 7 if big else 3)
    if prev.kind == "trans" and cur.kind == "valu" and (pw_v & cur.r):
        n = max(n, 1)
    if pv and pw_s:
        if cv and (pw_s & cur.r):
            n = max(n, 4 if cur.op.startswith(("v_readlane", "v_writelane")) else 2)
        if cur.kind in ("vmem", "dma") and (pw_s & cur.r):
            n = max(n, 5)
        if cur.kind == "salu" and (pw_s & cur.r):
            n = max(n, 1)
    if pv and pw_v & cur.r:
        if cur.op.startswith(("v_readfirstlane", "v_readlane")):
            n = max(n, 1)
        if cur.op.startswith("v_permlane") or "dpp" in cur.text or "row_" in cur.text:
            n = max(n, 2)
    if prev.kind == "salu" and ("s", "m0") in prev.w and cur.kind == "dma":
        n = max(n, 1)
    if prev.data and (prev.data & cur.w):
        n = max(n, 2)
    return n


class Asm:
    def __init__(self):
        self.lines = []
        self.hist = []
        self.nops = 0
        self.count = 0
        self.barriers = 0

    def raw(self, text):
        self.lines.append(text)

    def comment(self, text):
        self.lines.append("    ; " + text)

    def label(self, name, keep_hist=True):
        self.lines.append(name + ":")
        if not keep_hist:
            self.hist = []

    def __call__(self, text):
        for t in text.strip().split("\n"):
            t = t.strip()
            if not t or t.startswith(";"):
                continue
            self.ins(t)

    def ins(self, text):
        cur = parse(text)
        dist = 0
        req = 0
        for p in reversed(self.hist):
            n = need(p, cur)
            if n > dist:
                req = max(req, n - dist)
            dist += p.ws
            if dist >= 20:
                break
        while req > 0:
            k = min(req, 16)
            nop = parse("s_nop %d" % (k - 1))
            self.lines.append("    s_nop %d" % (k - 1))
            self.hist.append(nop)
            self.nops += k
            req -= k
        self.lines.append("    " + text)
        self.hist.append(cur)
        if len(self.hist) > 40:
            self.hist = self.hist[-40:]
        self.count += 1
        if cur.op == "s_barrier":
            self.barriers += 1

    def drain(self, n=12):
        self.ins("s_nop %d" % (n - 1))
        self.hist = []

    def text(self):
        return "\n".join(self.lines) + "\n"


def vr(a, n=1):
    return "v%d" % a if n == 1 else "v[%d:%d]" % (a, a + n - 1)


def sr(a, n=1):
    return "s%d" % a if n == 1 else "s[%d:%d]" % (a, a + n - 1)
```

```python
import sys, struct, math
from asm import Asm, vr, sr

NAME = "gated_mix__sliding_block__linear_kernel_hedgehog__prompt"


def f2u(x):
    return struct.unpack("<I", struct.pack("<f", x))[0]


class Cfg:
    stag_a = 1
    stag_b = 2
    profile = False
    force_slow = False
    o_flags = "sc1"
    out_flags = ""


KV_OFF = 0
PART_OFF = 0x500000
O_OFF = 0x600000
FLAG_OFF = 0xB00000
STAMP_OFF = 0xC00000
WS_BYTES = 0x10000000
SLOT = 45056
WOFF = 16384
KVH = 30720
QB = 122880
GARR = 147456
NONCE = 147968
PHI = 148480
ZERO = 152576
LDS12 = 154624
ROWH = 14336
PI = 57344
FI = 63488
OST = 69632
LOG2E = 1.4426950408889634
NEG = 0xf149f2ca
POLL_MAX = 20000

MF32 = "v_mfma_f32_32x32x16_bf16"
MF16 = "v_mfma_f32_16x16x32_bf16"


def srd(a, d, base, size):
    a(f"s_mov_b32 s{d}, s{base}")
    a(f"s_mov_b32 s{d+1}, s{base+1}")
    a(f"s_mov_b32 s{d+2}, {size}")
    a(f"s_mov_b32 s{d+3}, 0x20000")


def srd_off(a, d, base, off_s, size):
    a(f"s_add_u32 s{d}, s{base}, s{off_s}")
    a(f"s_addc_u32 s{d+1}, s{base+1}, 0")
    a(f"s_mov_b32 s{d+2}, {size}")
    a(f"s_mov_b32 s{d+3}, 0x20000")


class Stamps:
    def __init__(self, a, on, kernel_idx):
        self.a, self.on, self.k = a, on, kernel_idx

    def init(self):
        if self.on:
            for i in range(8):
                self.a(f"s_mov_b32 s{86+2*i}, 0")

    def __call__(self, i):
        if self.on:
            self.a(f"s_memrealtime s[{86+2*i}:{87+2*i}]")
            self.a("s_waitcnt lgkmcnt(0)")

    def flush(self, wave_s, ws_srd):
        if not self.on:
            return
        a = self.a
        a("s_mov_b64 exec, 1")
        a(f"s_lshl_b32 s3, s2, 3")
        a(f"s_add_u32 s3, s3, s{wave_s}")
        a(f"s_lshl_b32 s3, s3, 5")
        a(f"s_add_u32 s3, s3, {STAMP_OFF + self.k * 0x20000}")
        a("v_mov_b32 v0, s3")
        for i in range(8):
            a(f"v_mov_b32 v{2+i}, s{86+2*i}")
        a(f"buffer_store_dwordx4 v[2:5], v0, {sr(ws_srd,4)}, 0 offen")
        a(f"buffer_store_dwordx4 v[6:9], v0, {sr(ws_srd,4)}, 0 offen offset:16")
        a("s_waitcnt vmcnt(0)")


def poll(a, tag, vaddr, vtmp, nonce_s, cnt_s):
    a(f"s_mov_b32 s{cnt_s}, {POLL_MAX}")
    a.label(f"L_poll_{tag}")
    a(f"buffer_load_dword v{vtmp}, v{vaddr}, s[16:19], 0 offen sc1")
    a("s_waitcnt vmcnt(0)")
    a(f"v_cmp_ne_u32 vcc, s{nonce_s}, v{vtmp}")
    a(f"s_cbranch_vccz L_polled_{tag}")
    a("s_sleep 2")
    a(f"s_sub_u32 s{cnt_s}, s{cnt_s}, 1")
    a(f"s_cmp_lg_u32 s{cnt_s}, 0")
    a(f"s_cbranch_scc1 L_poll_{tag}")
    a.label(f"L_polled_{tag}")


def pack_segment(a, s, dst, tmp):
    base = 32 * s
    for rho in (1, 2, 3, 5, 6, 7):
        r = base + 4 * rho if rho < 4 else base + 16 + 4 * (rho - 4)
        a(f"v_cvt_pk_bf16_f32 v{dst[2*rho]}, v{r}, v{r+1}")
        a(f"v_cvt_pk_bf16_f32 v{dst[2*rho+1]}, v{r+2}, v{r+3}")
    X, Y, Z = base, base + 16, 96 + 4 * s
    for i, r in enumerate((X, Y, Z)):
        a(f"v_cvt_pk_bf16_f32 v{tmp+2*i}, v{r}, v{r+1}")
        a(f"v_cvt_pk_bf16_f32 v{tmp+2*i+1}, v{r+2}, v{r+3}")
    tX, tY, tZ = tmp, tmp + 2, tmp + 4
    for rho, lo, hi in ((0, tX, tZ), (4, tY, tX), (8, tZ, tY)):
        for e in range(2):
            a(f"v_cndmask_b32 v{dst[2*rho+e]}, v{lo+e}, v{hi+e}, s[40:41]")


def gate_sigmoid(a, dst, src, one_minus):
    a(f"v_mul_f32 v{dst}, {hex(f2u(LOG2E if one_minus else -LOG2E))}, v{src}")
    a(f"v_exp_f32 v{dst}, v{dst}")
    a(f"v_add_f32 v{dst}, 1.0, v{dst}")
    a(f"v_rcp_f32 v{dst}, v{dst}")


def dual_softmax(a, p, T, dst, m):
    flat = []
    for r in p:
        flat += [r, r + 1]
    mx, mn, sp, sn = m, m + 2, m + 4, m + 6
    a(f"v_max3_f32 v{mx}, v{flat[0]}, v{flat[1]}, v{flat[2]}")
    a(f"v_min3_f32 v{mn}, v{flat[0]}, v{flat[1]}, v{flat[2]}")
    for i in range(3, 17, 2):
        a(f"v_max3_f32 v{mx}, v{mx}, v{flat[i]}, v{flat[i+1]}")
        a(f"v_min3_f32 v{mn}, v{mn}, v{flat[i]}, v{flat[i+1]}")
    a(f"v_max_f32 v{mx}, v{mx}, v{flat[17]}")
    a(f"v_min_f32 v{mn}, v{mn}, v{flat[17]}")
    a(f"v_mul_f32 v{mx}, s82, v{mx}")
    a(f"v_mul_f32 v{mn}, s80, v{mn}")
    for i in range(9):
        a(f"v_pk_fma_f32 {vr(T+2*i,2)}, {vr(p[i],2)}, s[80:81], {vr(mx,2)} op_sel_hi:[1,1,0]")
        a(f"v_pk_fma_f32 {vr(p[i],2)}, {vr(p[i],2)}, s[82:83], {vr(mn,2)} op_sel_hi:[1,1,0]")
    for i in range(18):
        a(f"v_exp_f32 v{T+i}, v{T+i}")
    for i in range(18):
        a(f"v_exp_f32 v{flat[i]}, v{flat[i]}")
    a(f"v_pk_add_f32 {vr(sp,2)}, {vr(T,2)}, {vr(T+2,2)}")
    a(f"v_pk_add_f32 {vr(sn,2)}, {vr(p[0],2)}, {vr(p[1],2)}")
    for i in range(2, 9):
        a(f"v_pk_add_f32 {vr(sp,2)}, {vr(sp,2)}, {vr(T+2*i,2)}")
        a(f"v_pk_add_f32 {vr(sn,2)}, {vr(sn,2)}, {vr(p[i],2)}")
    a(f"v_add_f32 v{sp}, v{sp}, v{sp+1}")
    a(f"v_add_f32 v{sn}, v{sn}, v{sn+1}")
    a(f"v_rcp_f32 v{sp}, v{sp}")
    a(f"v_rcp_f32 v{sn}, v{sn}")
    for i in range(9):
        a(f"v_pk_mul_f32 {vr(T+2*i,2)}, {vr(T+2*i,2)}, {vr(sp,2)} op_sel_hi:[1,0]")
    for i in range(9):
        a(f"v_pk_mul_f32 {vr(p[i],2)}, {vr(p[i],2)}, {vr(sn,2)} op_sel_hi:[1,0]")
    for i in range(9):
        a(f"v_cvt_pk_bf16_f32 v{dst[i]}, v{T+2*i}, v{T+2*i+1}")
    for i in range(9):
        a(f"v_cvt_pk_bf16_f32 v{dst[9+i]}, v{p[i]}, v{p[i]+1}")


def gen_k12(cfg):
    a = Asm()
    st = Stamps(a, cfg.profile, 0)
    a("s_cmp_ge_u32 s2, 256")
    a("s_cbranch_scc1 L12_end")
    a("s_load_dwordx4 s[44:47], s[0:1], 0")
    a("s_load_dwordx4 s[48:51], s[0:1], 32")
    a("s_load_dwordx2 s[52:53], s[0:1], 56")
    a("s_load_dwordx4 s[56:59], s[0:1], 72")
    st.init()
    a("v_lshrrev_b32 v1, 6, v0")
    a("v_and_b32 v255, 63, v0")
    a("v_readfirstlane_b32 s28, v1")
    a("s_and_b32 s30, s2, 7")
    a("s_lshr_b32 s31, s2, 3")
    a("s_and_b32 s24, s30, 1")
    a("s_lshl_b32 s24, s24, 3")
    a("s_and_b32 s32, s31, 7")
    a("s_add_u32 s24, s24, s32")
    a("s_lshr_b32 s25, s30, 1")
    a("s_lshl_b32 s25, s25, 2")
    a("s_lshr_b32 s32, s31, 3")
    a("s_add_u32 s25, s25, s32")
    a("s_lshr_b32 s26, s25, 3")
    a("s_and_b32 s27, s25, 7")
    a("s_and_b32 s29, s28, 3")
    a("s_mov_b32 s40, 0")
    a("s_mov_b32 s41, -1")
    a("s_waitcnt lgkmcnt(0)")
    st(0)
    srd(a, 8, 44, 2048 * 1152)
    a("s_cmp_eq_u32 s26, 0")
    a("s_cselect_b32 s12, s46, s48")
    a("s_cselect_b32 s13, s47, s49")
    a(f"s_mov_b32 s14, {576*3456}")
    a("s_mov_b32 s15, 0x20000")
    srd(a, 16, 58, WS_BYTES)
    srd(a, 20, 52, 1152)
    a("s_cmp_ge_u32 s28, 4")
    a("s_cbranch_scc1 L12_loader")

    XA, WA, WA6 = 176, 180, 181
    a("v_and_b32 v1, 31, v255")
    a("v_lshrrev_b32 v2, 5, v255")
    a("v_bfe_u32 v3, v255, 1, 3")
    a("v_xor_b32 v3, v3, v2")
    a("s_lshl_b32 s30, s28, 12")
    a("v_lshl_add_u32 v4, v1, 7, s30")
    for s in range(4):
        a(f"v_xor_b32 v5, {2*s}, v3")
        a(f"v_lshl_add_u32 v{XA+s}, v5, 4, v4")
    a("v_bfe_u32 v1, v255, 2, 2")
    a("v_lshl_add_u32 v1, v2, 3, v1")
    a("v_mul_u32_u24 v1, 448, v1")
    a(f"v_add_u32 v1, {WOFF}, v1")
    a("v_bfe_u32 v2, v255, 4, 1")
    a("v_bfe_u32 v3, v255, 1, 1")
    a("v_lshl_add_u32 v2, v2, 1, v3")
    a("v_and_b32 v3, 1, v255")
    a("v_add_u32 v4, 3, v2")
    a("v_and_b32 v4, 3, v4")
    a("v_add_u32 v4, 4, v4")
    a("v_cmp_eq_u32 vcc, 1, v3")
    a("v_cndmask_b32 v4, v2, v4, vcc")
    a(f"v_lshl_add_u32 v{WA}, v4, 3, v1")
    a("v_lshl_add_u32 v4, v2, 1, v3")
    a("v_min_u32 v4, 6, v4")
    a(f"v_lshl_add_u32 v{WA6}, v4, 3, v1")
    a(f"v_add_u32 v{WA6}, 384, v{WA6}")
    for i in range(112):
        a(f"v_mov_b32 v{i}, 0")
    WF = (112, 140)
    XF = (168, 172)

    def reads(s, buf):
        L = [f"ds_read_b128 {vr(XF[buf],4)}, v{XA+s}"]
        for t in range(7):
            for u in range(2):
                off = (16 * s + 4 * u) * 448 + (64 * t if t < 6 else 0)
                L.append(f"ds_read_b64_tr_b16 {vr(WF[buf]+4*t+2*u,2)}, v{WA if t < 6 else WA6} offset:{off}")
        return L

    def mfmas(buf):
        return [f"{MF32} {vr(16*t,16)}, {vr(WF[buf]+4*t,4)}, {vr(XF[buf],4)}, {vr(16*t,16)}" for t in range(7)]

    def interleave(ms, rd):
        k = 0
        for i, m in enumerate(ms):
            a(m)
            for _ in range(3):
                if k < len(rd):
                    a(rd[k])
                    k += 1
        assert k == len(rd)

    a("s_mov_b32 s74, 0")
    a("s_mov_b32 s75, 0")
    a(f"s_mov_b32 s76, {hex((-2*SLOT) & 0xffffffff)}")
    a("s_barrier")
    st(1)
    for l in reads(0, 0):
        a(l)
    a.label("L12_kloop")
    for s in range(3):
        a("s_waitcnt lgkmcnt(0)")
        interleave(mfmas(s & 1), reads(s + 1, (s + 1) & 1))
    a("s_add_u32 s75, s75, 1")
    a("s_cmp_eq_u32 s75, 3")
    a(f"s_cselect_b32 s30, s76, {SLOT}")
    a("s_cselect_b32 s75, 0, s75")
    for r in (XA, XA + 1, XA + 2, XA + 3, WA, WA6):
        a(f"v_add_u32 v{r}, s30, v{r}")
    a("s_add_u32 s74, s74, 1")
    a("s_cmp_eq_u32 s74, 9")
    a("s_waitcnt lgkmcnt(0)")
    a("s_barrier")
    a("s_cbranch_scc1 L12_klast")
    interleave(mfmas(1), reads(0, 0))
    a("s_branch L12_kloop")
    a.barriers += 8
    a.label("L12_klast")
    for m in mfmas(1):
        a(m)
    st(2)
    a("s_cmp_lg_u32 s26, 0")
    a("s_cbranch_scc1 L12_B_compute")

    barA = a.barriers
    RA, RB, QA_, QB_ = 112, 132, 152, 162
    a("v_and_b32 v172, 31, v255")
    a("v_lshrrev_b32 v173, 5, v255")
    a("s_lshl_b32 s30, s28, 5")
    a("v_add_u32 v172, s30, v172")
    a("v_mul_u32_u24 v174, 80, v172")
    a(f"v_mul_u32_u24 v175, {2*KVH}, v173")
    a(f"s_mov_b32 s31, {256*80}")
    a("v_add3_u32 v174, v174, v175, s31")
    a("v_mul_u32_u24 v175, 48, v172")
    a(f"v_mul_u32_u24 v176, {2*6144}, v173")
    a(f"s_mov_b32 s31, {QB}")
    a("v_add3_u32 v175, v175, v176, s31")
    a(f"v_lshlrev_b32 v176, 2, v172")
    a(f"v_add_u32 v176, {GARR}, v176")
    a(f"v_mov_b32 v{RA+9}, 0x3f80")
    a(f"v_mov_b32 v{RA+11}, 0")
    a(f"v_mov_b32 v{RB+9}, 0x3f80")
    a(f"v_mov_b32 v{RB+11}, 0")
    c = LOG2E / math.sqrt(18.0)
    a(f"s_mov_b32 s80, {hex(f2u(c))}")
    dk = [RA + 12 + i for i in range(8)] + [RA + 10] + [RB + 12 + i for i in range(8)] + [RB + 10]
    dv = [RA + i for i in range(8)] + [RA + 8] + [RB + i for i in range(8)] + [RB + 8]
    dq = [QA_ + i for i in range(9)] + [QB_ + i for i in range(9)]
    pack_segment(a, 1, dk, 180)
    pack_segment(a, 2, dv, 186)
    for which, R in enumerate((RA, RB)):
        for i in range(5):
            a(f"ds_write_b128 v174, {vr(R+4*i,4)} offset:{which*KVH + 16*i}")
    for r in list(range(0, 32, 2)) + [96, 98]:
        a(f"v_pk_mul_f32 {vr(r,2)}, {vr(r,2)}, s[80:81] op_sel_hi:[1,0]")
    pack_segment(a, 0, dq, 180)
    gate_sigmoid(a, 177, 108, False)
    for which, R in enumerate((QA_, QB_)):
        a(f"ds_write_b128 v175, {vr(R,4)} offset:{which*6144}")
        a(f"ds_write_b128 v175, {vr(R+4,4)} offset:{which*6144+16}")
        a(f"ds_write_b32 v175, v{R+8} offset:{which*6144+32}")
    a("ds_write_b32 v176, v177")
    a("s_waitcnt lgkmcnt(0)")
    a("s_barrier")

    a.label("L12_A_common", keep_hist=False)
    st(3)
    S = (0, 16)
    O_, P_, KA, VA, MD, MF_, QC, QN = 32, 48, (56, 64), (72, 80), 88, 104, 120, 128
    KAD, EAD, VAD, OAD, OAD2, G_ = 136, 137, 138, 139, 140, 141
    a("s_lshr_b32 s30, s28, 1")
    a("s_and_b32 s31, s28, 1")
    a(f"s_mul_i32 s32, s30, {KVH}")
    a("s_mul_i32 s33, s31, 5120")
    a("s_add_u32 s32, s32, s33")
    a(f"s_add_u32 s32, s32, {256*80}")
    a("v_lshlrev_b32 v142, 4, v255")
    a("v_add_u32 v143, s32, v142")
    for i in range(5):
        a(f"ds_read_b128 {vr(4*i,4)}, v143 offset:{1024*i}")
    a("v_mov_b32 v144, %d" % NONCE)
    a("ds_read_b32 v145, v144")
    a("s_and_b32 s34, s28, 3")
    a("s_lshr_b32 s35, s28, 2")
    a("s_lshl_b32 s35, s35, 1")
    a("v_and_b32 v146, 31, v255")
    a("v_lshrrev_b32 v147, 5, v255")
    a("s_lshl_b32 s36, s34, 5")
    a("v_add_u32 v148, s36, v146")
    a("v_mul_u32_u24 v149, 48, v148")
    a("s_mul_i32 s36, s35, 6144")
    a(f"s_add_u32 s36, s36, {QB}")
    a("v_add_u32 v149, s36, v149")
    a("v_lshl_add_u32 v150, v147, 4, v149")
    a(f"ds_read_b128 {vr(QC,4)}, v150")
    a(f"ds_read_b128 {vr(QN,4)}, v150 offset:6144")
    a(f"ds_read_b32 v{QC+6}, v149 offset:32")
    a(f"ds_read_b32 v{QN+6}, v149 offset:{6144+32}")
    a("v_lshlrev_b32 v150, 2, v148")
    a(f"v_add_u32 v150, {GARR}, v150")
    a(f"ds_read_b32 v{G_}, v150")
    a("s_lshl_b32 s36, s27, 2")
    a("s_add_u32 s36, s36, s30")
    a("s_mul_i32 s36, s36, 163840")
    a("s_mul_i32 s37, s24, 10240")
    a("s_add_u32 s36, s36, s37")
    a("s_add_u32 s36, s36, s33")
    for i in range(5):
        a(f"s_waitcnt lgkmcnt({10 - i})")
        if i == 4:
            a("s_add_u32 s36, s36, 4096")
        a(f"buffer_store_dwordx4 {vr(4*i,4)}, v142, s[16:19], s36 offen offset:{(1024*i) % 4096} sc1")
    a("v_mul_u32_u24 v150, 144, v148")
    a("s_mul_i32 s36, s35, 36")
    a(f"s_add_u32 s36, s36, {QB}")
    a(f"v_add_u32 v{OAD2}, s36, v150")
    a(f"v_lshl_add_u32 v{OAD}, v147, 3, v{OAD2}")
    a(f"s_mul_i32 s36, s35, {KVH}")
    a("s_mul_i32 s37, s34, 2560")
    a("s_add_u32 s36, s36, s37")
    a("v_and_b32 v150, 16, v255")
    a("v_and_b32 v151, 3, v255")
    a("v_lshl_add_u32 v150, v151, 2, v150")
    a("v_bfe_u32 v151, v255, 2, 2")
    a("v_add_u32 v150, v150, v151")
    a("v_mul_u32_u24 v150, 80, v150")
    a("v_add3_u32 v%d, v150, s36, 32" % EAD)
    a(f"v_lshl_add_u32 v{KAD}, v147, 4, v{EAD}")
    a(f"v_add_u32 v{KAD}, 16, v{KAD}")
    a("v_bfe_u32 v150, v255, 2, 2")
    a("v_lshl_add_u32 v150, v150, 2, v147")
    a("v_mul_u32_u24 v150, 80, v150")
    a("v_and_b32 v151, 3, v255")
    a("v_lshlrev_b32 v151, 3, v151")
    a("v_and_b32 v152, 16, v255")
    a("v_cmp_ne_u32 vcc, 0, v152")
    a("v_cndmask_b32 v151, v151, 32, vcc")
    a(f"v_add3_u32 v{VAD}, v150, v151, s36")
    a("v_sub_u32 v150, v146, v147")
    a(f"v_mov_b32 v151, {hex(NEG)}")
    for r in range(16):
        cr = 16 * (r >> 3) + 4 * (r & 3) + 2 * ((r >> 2) & 1)
        a(f"v_cmp_le_i32 vcc, {cr}, v150")
        a(f"v_cndmask_b32 v{MD+r}, v151, 0, vcc")
        a(f"v_cndmask_b32 v{MF_+r}, 0, v151, vcc")
    a("s_waitcnt lgkmcnt(0)")
    a("v_readfirstlane_b32 s42, v145")
    for q in (QC, QN):
        a(f"v_mov_b32 v{q+4}, 0")
        a(f"v_mov_b32 v{q+5}, 0")
        a(f"v_cndmask_b32 v{q+6}, v{q+6}, 0, s[40:41]")
        a(f"v_mov_b32 v{q+7}, 0")
    a("s_waitcnt vmcnt(0)")
    a("s_barrier")
    st(4)
    a("s_cmp_lg_u32 s28, 0")
    a("s_cbranch_scc1 L12_A_nopoll")
    a("s_lshl_b32 s30, s25, 4")
    a("s_add_u32 s30, s30, s24")
    a("s_lshl_b32 s30, s30, 7")
    a(f"s_add_u32 s30, s30, {FLAG_OFF}")
    a("v_mov_b32 v150, s30")
    a("v_mov_b32 v151, s42")
    a("s_mov_b64 exec, 1")
    a("buffer_store_dword v151, v150, s[16:19], 0 offen sc1")
    a("s_mov_b64 exec, -1")
    a("s_cmp_eq_u32 s24, 0")
    a("s_cbranch_scc1 L12_A_nopoll")
    a("v_add_u32 v151, 1, v255")
    a("v_lshlrev_b32 v151, 7, v151")
    a("v_sub_u32 v150, v150, v151")
    a("s_cmp_eq_u32 s24, 1")
    a("s_cselect_b64 exec, 1, 3")
    poll(a, "A", 150, 151, 42, 30)
    a("s_mov_b64 exec, -1")
    a.label("L12_A_nopoll", keep_hist=False)
    a("s_barrier")
    st(5)
    a("s_lshr_b32 s30, s28, 1")
    a("s_and_b32 s31, s28, 1")
    a("s_add_u32 s32, s24, s31")
    a("s_mov_b32 s20, s58")
    a("s_mov_b32 s21, s59")
    a("s_cmp_ge_u32 s32, 2")
    a(f"s_cselect_b32 s22, {WS_BYTES}, 0")
    a("s_cselect_b32 s32, s32, 2")
    a("s_sub_u32 s32, s32, 2")
    a("s_mul_i32 s32, s32, 10240")
    a("s_lshl_b32 s33, s27, 2")
    a("s_add_u32 s33, s33, s30")
    a("s_mul_i32 s33, s33, 163840")
    a("s_add_u32 s32, s32, s33")
    a(f"s_mul_i32 s33, s30, {KVH}")
    a("s_mul_i32 s36, s31, 10240")
    a("s_add_u32 s33, s33, s36")
    for i in range(10):
        a("s_mov_b32 m0, s33")
        a("buffer_load_dwordx4 v142, s[20:23], s32 offen sc1 lds")
        if i < 9:
            a("s_add_u32 s33, s33, 1024")
            a("s_add_u32 s32, s32, 1024")
    a("s_waitcnt vmcnt(0)")
    a("s_barrier")
    st(6)
    a("s_mov_b32 s74, 0")
    a.label("L12_unit", keep_hist=False)

    def kread(j, buf):
        return [f"ds_read_b128 {vr(KA[buf],4)}, v{KAD} offset:{2560*j}",
                f"ds_read_b128 {vr(KA[buf]+4,4)}, v{EAD} offset:{2560*j}"]

    def vread(j, buf):
        return [f"ds_read_b64_tr_b16 {vr(VA[buf]+4*jj+2*u,2)}, v{VAD} offset:{2560*j + (16*jj+2*u)*80}"
                for jj in range(2) for u in range(2)]

    def smf(j, dst, buf):
        cc = vr(MF_, 16) if j == 0 else vr(MD, 16) if j == 8 else "0"
        return [f"{MF32} {vr(dst,16)}, {vr(KA[buf],4)}, {vr(QC,4)}, {cc}",
                f"{MF32} {vr(dst,16)}, {vr(KA[buf]+4,4)}, {vr(QC+4,4)}, {vr(dst,16)}"]

    for l in kread(0, 0) + kread(1, 1) + vread(0, 0):
        a(l)
    a("s_waitcnt lgkmcnt(6)")
    for l in smf(0, S[0], 0):
        a(l)
    for j in range(9):
        cur = S[j & 1]
        n_after = 0
        if j < 8:
            a("s_waitcnt lgkmcnt(4)")
            for l in smf(j + 1, S[(j + 1) & 1], (j + 1) & 1):
                a(l)
            rd = (kread(j + 2, j & 1) if j + 2 <= 8 else []) + vread(j + 1, (j + 1) & 1)
            for l in rd:
                a(l)
            n_after = len(rd)
        for jj in range(2):
            for i in range(8):
                a(f"v_exp_f32 v{cur+8*jj+i}, v{cur+8*jj+i}")
            for i in range(4):
                a(f"v_cvt_pk_bf16_f32 v{P_+4*jj+i}, v{cur+8*jj+2*i}, v{cur+8*jj+2*i+1}")
            if jj == 0:
                a(f"s_waitcnt lgkmcnt({n_after})")
            cc = "0" if (j == 0 and jj == 0) else vr(O_, 16)
            a(f"{MF32} {vr(O_,16)}, {vr(VA[j&1]+4*jj,4)}, {vr(P_+4*jj,4)}, {cc}")
    a(f"s_mov_b32 s30, {hex(f2u(2.0**-60))}")
    a(f"s_mov_b32 s31, {hex(f2u(2.0**60))}")
    a(f"v_cmp_le_f32 vcc, s30, v{O_+10}")
    a(f"v_cmp_ge_f32 s[32:33], s31, v{O_+10}")
    a("s_and_b64 vcc, vcc, s[32:33]")
    a("s_cmp_eq_u64 vcc, -1")
    if cfg.force_slow:
        a("s_branch L12_slow")
    else:
        a("s_cbranch_scc0 L12_slow")
    a.label("L12_unit_fin", keep_hist=True)
    a(f"v_rcp_f32 v142, v{O_+10}")
    a(f"v_mul_f32 v142, v142, v{G_}")
    for i in range(5):
        a(f"v_pk_mul_f32 {vr(O_+2*i,2)}, {vr(O_+2*i,2)}, v[142:143] op_sel_hi:[1,0]")
    for i in range(5):
        a(f"v_cvt_pk_bf16_f32 v{P_+i}, v{O_+2*i}, v{O_+2*i+1}")
    a(f"ds_write2_b32 v{OAD}, v{P_}, v{P_+1} offset0:0 offset1:1")
    a(f"ds_write2_b32 v{OAD}, v{P_+2}, v{P_+3} offset0:4 offset1:5")
    a(f"ds_write_b32 v{OAD2}, v{P_+4} offset:32")
    for i in range(8):
        a(f"v_mov_b32 v{QC+i}, v{QN+i}")
    for r in (KAD, EAD, VAD):
        a(f"v_add_u32 v{r}, {KVH}, v{r}")
    a(f"v_add_u32 v{OAD}, 36, v{OAD}")
    a(f"v_add_u32 v{OAD2}, 36, v{OAD2}")
    a("s_add_u32 s74, s74, 1")
    a("s_cmp_lt_u32 s74, 2")
    a("s_waitcnt lgkmcnt(0)")
    a("s_cbranch_scc1 L12_unit")
    a("s_barrier")
    st(7)
    a("s_mul_i32 s30, s25, 294912")
    a("s_mul_i32 s31, s24, 18432")
    a("s_add_u32 s30, s30, s31")
    a(f"s_add_u32 s30, s30, {O_OFF}")
    srd_off(a, 20, 58, 30, 18432)
    a("s_mul_i32 s30, s28, 3072")
    a("v_lshlrev_b32 v142, 4, v255")
    a("v_add_u32 v142, s30, v142")
    a(f"v_add_u32 v143, {QB}, v142")
    for i in range(3):
        a(f"ds_read_b128 {vr(4*i,4)}, v143 offset:{1024*i}")
    for i in range(3):
        a(f"s_waitcnt lgkmcnt({2-i})")
        a(f"buffer_store_dwordx4 {vr(4*i,4)}, v142, s[20:23], 0 offen offset:{1024*i} {cfg.o_flags}")
    st.flush(28, 16)
    a("s_endpgm")
    nbarA = a.barriers

    a.label("L12_slow", keep_hist=False)
    a("s_lshl_b32 s30, s24, 2")
    a("s_add_u32 s30, s30, s34")
    a("s_sub_u32 s30, 8, s30")
    a("s_max_i32 s36, s30, 0")
    a(f"v_mov_b32 v150, {hex(NEG)}")
    for ps in range(2):
        a("s_mov_b32 s37, s36")
        a("s_mul_i32 s30, s36, 2560")
        a(f"v_add_u32 v144, s30, v{KAD}")
        a(f"v_add_u32 v145, s30, v{EAD}")
        a(f"v_add_u32 v146, s30, v{VAD}")
        if ps == 1:
            for i in range(16):
                a(f"v_mov_b32 v{O_+i}, 0")
        a.label(f"L12_slow{ps}", keep_hist=False)
        a(f"ds_read_b128 {vr(KA[0],4)}, v144")
        a(f"ds_read_b128 {vr(KA[0]+4,4)}, v145")
        if ps == 1:
            for jj in range(2):
                for u in range(2):
                    a(f"ds_read_b64_tr_b16 {vr(VA[0]+4*jj+2*u,2)}, v146 offset:{(16*jj+2*u)*80}")
        a("s_waitcnt lgkmcnt(0)")
        a("s_cmp_eq_u32 s37, 0")
        a(f"s_cbranch_scc1 L12_slow{ps}_far")
        a("s_cmp_eq_u32 s37, 8")
        a(f"s_cbranch_scc1 L12_slow{ps}_diag")
        a(f"{MF32} {vr(0,16)}, {vr(KA[0],4)}, {vr(QC,4)}, 0")
        a(f"s_branch L12_slow{ps}_j")
        a.label(f"L12_slow{ps}_far", keep_hist=False)
        a(f"{MF32} {vr(0,16)}, {vr(KA[0],4)}, {vr(QC,4)}, {vr(MF_,16)}")
        a(f"s_branch L12_slow{ps}_j")
        a.label(f"L12_slow{ps}_diag", keep_hist=False)
        a(f"{MF32} {vr(0,16)}, {vr(KA[0],4)}, {vr(QC,4)}, {vr(MD,16)}")
        a.label(f"L12_slow{ps}_j", keep_hist=True)
        a(f"{MF32} {vr(0,16)}, {vr(KA[0]+4,4)}, {vr(QC+4,4)}, {vr(0,16)}")
        if ps == 0:
            for i in range(8):
                a(f"v_max3_f32 v150, v150, v{2*i}, v{2*i+1}")
        else:
            for i in range(16):
                a(f"v_sub_f32 v{i}, v{i}, v150")
            for i in range(16):
                a(f"v_exp_f32 v{i}, v{i}")
            for i in range(8):
                a(f"v_cvt_pk_bf16_f32 v{P_+i}, v{2*i}, v{2*i+1}")
            for jj in range(2):
                a(f"{MF32} {vr(O_,16)}, {vr(VA[0]+4*jj,4)}, {vr(P_+4*jj,4)}, {vr(O_,16)}")
        for r in (144, 145, 146):
            a(f"v_add_u32 v{r}, 2560, v{r}")
        a.drain(12)
        a("s_add_u32 s37, s37, 1")
        a("s_cmp_le_u32 s37, 8")
        a(f"s_cbranch_scc1 L12_slow{ps}")
        if ps == 0:
            a("v_mov_b32 v151, v150")
            a("v_permlane32_swap_b32 v150, v151")
            a("s_nop 1")
            a("v_max_f32 v150, v150, v151")
    a.drain(12)
    a("s_branch L12_unit_fin")

    a.label("L12_B_compute", keep_hist=False)
    a.drain(12)
    a.barriers = barA
    RK, RQ, ROWA, ROWB = 112, 136, 160, 188
    TA, TB, TR, TT, MI = 48, 64, 80, 224, 242
    GM = 254
    a(f"s_mov_b32 s80, {hex(f2u(LOG2E))}")
    a(f"s_mov_b32 s81, {hex(f2u(LOG2E))}")
    a(f"s_mov_b32 s82, {hex(f2u(-LOG2E))}")
    a(f"s_mov_b32 s83, {hex(f2u(-LOG2E))}")
    dk = [RK + i for i in range(9)] + [RK + 12 + i for i in range(9)]
    dq = [RQ + i for i in range(9)] + [RQ + 12 + i for i in range(9)]
    dv = [ROWA + 18 + i for i in range(9)] + [ROWB + 18 + i for i in range(9)]
    a("v_lshrrev_b32 v216, 5, v255")
    a("v_and_b32 v217, 1, v255")
    a("v_bfe_u32 v218, v255, 4, 1")
    a("v_bfe_u32 v219, v255, 1, 1")
    a("v_lshl_add_u32 v218, v218, 1, v219")
    a("v_bfe_u32 v219, v255, 2, 2")
    a("v_mul_u32_u24 v219, 40, v219")
    a("v_mul_u32_u24 v220, 1920, v216")
    a(f"s_mov_b32 s30, {PHI}")
    a("v_add3_u32 v219, v219, v220, s30")
    a(f"v_mov_b32 v221, {ZERO}")
    a("v_cmp_eq_u32 s[32:33], v216, v217")
    a("v_lshl_add_u32 v220, v218, 3, v219")
    a("v_cndmask_b32 v250, v221, v220, s[32:33]")
    for which in range(2):
        a(f"v_cmp_eq_u32 vcc, {which}, v218")
        a("s_and_b64 vcc, vcc, s[32:33]")
        a(f"v_add_u32 v220, {32 + 960*which}, v219")
        a(f"v_cndmask_b32 v{251+which}, v221, v220, vcc")
    pack_segment(a, 1, dk, 216)
    gate_sigmoid(a, GM, 108, True)
    pack_segment(a, 0, dq, 216)
    pack_segment(a, 2, dv, 216)
    for R in (RK, RQ):
        for i in (9, 10, 11, 21, 22, 23):
            a(f"v_mov_b32 v{R+i}, 0")
    a(f"v_mov_b32 v{ROWA+27}, 0x3f80")
    a(f"v_mov_b32 v{ROWB+27}, 0x3f80")
    for which in range(2):
        for s in range(3):
            for u in range(2):
                a(f"ds_read_b64_tr_b16 {vr(12*which+4*s+2*u,2)}, v250 offset:{960*which + (8*s+4*u)*40}")
    for which in range(2):
        for s in range(3):
            for u in range(2):
                a(f"ds_read_b64_tr_b16 {vr(24+12*which+4*s+2*u,2)}, v{251+which} offset:{(8*s+4*u)*40}")

    def transform(R):
        for s in range(3):
            a(f"{MF32} {vr(TA,16)}, {vr(4*s,4)}, {vr(R+4*s,4)}, {'0' if s == 0 else vr(TA,16)}")
        for s in range(3):
            a(f"{MF32} {vr(TR,16)}, {vr(24+4*s,4)}, {vr(R+4*s,4)}, {'0' if s == 0 else vr(TR,16)}")
        for s in range(3):
            a(f"{MF32} {vr(TR,16)}, {vr(36+4*s,4)}, {vr(R+12+4*s,4)}, {vr(TR,16)}")
        for s in range(3):
            a(f"{MF32} {vr(TB,16)}, {vr(12+4*s,4)}, {vr(R+12+4*s,4)}, {'0' if s == 0 else vr(TB,16)}")

    pa = [TA + 2 * i for i in range(8)] + [TR]
    pb = [TB + 2 * i for i in range(8)] + [TR + 4]
    a("s_waitcnt lgkmcnt(0)")
    transform(RK)
    a("v_and_b32 v216, 31, v255")
    a("s_lshl_b32 s30, s28, 5")
    a("v_add_u32 v216, s30, v216")
    a("v_mul_u32_u24 v253, 112, v216")
    a("v_lshrrev_b32 v217, 5, v255")
    a(f"v_mul_u32_u24 v217, {2*ROWH}, v217")
    a("v_add_u32 v253, v253, v217")
    dual_softmax(a, pa, TT, [ROWA + i for i in range(18)], MI)
    for i in range(7):
        a(f"ds_write_b128 v253, {vr(ROWA+4*i,4)} offset:{16*i}")
    dual_softmax(a, pb, TT, [ROWB + i for i in range(18)], MI)
    for i in range(7):
        a(f"ds_write_b128 v253, {vr(ROWB+4*i,4)} offset:{ROWH + 16*i}")
    a("s_waitcnt lgkmcnt(0)")
    a("s_barrier")
    st(3)
    a("v_lshrrev_b32 v216, 4, v255")
    a("v_bfe_u32 v217, v255, 2, 2")
    a("v_lshlrev_b32 v216, 3, v216")
    a("v_lshl_add_u32 v216, v217, 1, v216")
    a("v_mul_u32_u24 v216, 112, v216")
    a("v_and_b32 v217, 3, v255")
    a("v_lshl_add_u32 v216, v217, 3, v216")
    a(f"s_mul_i32 s30, s28, {ROWH}")
    a("v_add_u32 v216, s30, v216")
    KVD = 88
    FR = (48, 68)

    def kvreads(kap, buf):
        L = []
        for t in range(5):
            col = 32 * t if t < 3 else 72 + 32 * (t - 3)
            for u in range(2):
                L.append(f"ds_read_b64_tr_b16 {vr(FR[buf]+4*t+2*u,2)}, v216 offset:{kap*3584 + u*112 + col}")
        return L

    a("v_mov_b32 v217, %d" % NONCE)
    a("ds_read_b32 v249, v217")
    for l in kvreads(0, 0):
        a(l)
    for kap in range(4):
        if kap < 3:
            for l in kvreads(kap + 1, (kap + 1) & 1):
                a(l)
            a("s_waitcnt lgkmcnt(10)")
        else:
            a("s_waitcnt lgkmcnt(0)")
        b = FR[kap & 1]
        for dt in range(2):
            for ft in range(3):
                d = KVD + 4 * (3 * dt + ft)
                a(f"{MF16} {vr(d,4)}, {vr(b+4*ft,4)}, {vr(b+12+4*dt,4)}, {'0' if kap == 0 else vr(d,4)}")
    a("v_readfirstlane_b32 s42, v249")
    a("v_and_b32 v216, 15, v255")
    a("v_mul_u32_u24 v216, 80, v216")
    a("v_lshrrev_b32 v217, 4, v255")
    a("v_lshl_add_u32 v216, v217, 3, v216")
    a("s_mul_i32 s30, s28, 1536")
    a(f"s_add_u32 s30, s30, {PI}")
    a("v_add_u32 v216, s30, v216")
    a("v_lshlrev_b32 v217, 4, v255")
    a("v_add_u32 v218, s30, v217")
    for t in range(6):
        d = KVD + 4 * t
        a(f"v_cvt_pk_bf16_f32 v{48+2*t}, v{d}, v{d+1}")
        a(f"v_cvt_pk_bf16_f32 v{49+2*t}, v{d+2}, v{d+3}")
    a("s_mov_b32 s32, 0x00070007")
    a("s_mov_b32 s33, 0x00070007")
    a("s_mov_b32 s34, 0x00070007")
    a("s_mov_b32 s35, 0")
    for dt in range(2):
        for ft in range(3):
            t = 3 * dt + ft
            if dt == 0 and ft == 2:
                a("s_mov_b32 exec_hi, 0")
            if dt == 1 and ft == 0:
                a("s_mov_b64 exec, s[32:33]")
            if dt == 1 and ft == 2:
                a("s_mov_b64 exec, s[34:35]")
            a(f"ds_write_b64 v216, {vr(48+2*t,2)} offset:{dt*16*80 + ft*32}")
    a("s_mov_b64 exec, -1")
    a("s_waitcnt lgkmcnt(0)")
    a("ds_read_b128 v[60:63], v218")
    a("ds_read_b128 v[64:67], v218 offset:1024")
    a("s_lshl_b32 s30, s27, 4")
    a("s_add_u32 s30, s30, s24")
    a("s_lshl_b32 s30, s30, 2")
    a("s_add_u32 s30, s30, s28")
    a("s_mul_i32 s30, s30, 1536")
    a(f"s_add_u32 s30, s30, {PART_OFF}")
    srd_off(a, 20, 58, 30, 1520)
    a("s_waitcnt lgkmcnt(1)")
    a("buffer_store_dwordx4 v[60:63], v217, s[20:23], 0 offen sc1")
    a("s_waitcnt lgkmcnt(0)")
    a("buffer_store_dwordx4 v[64:67], v217, s[20:23], 0 offen offset:1024 sc1")
    transform(RQ)
    a("s_waitcnt vmcnt(0)")
    a("s_barrier")
    st(4)
    a("s_cmp_lg_u32 s28, 0")
    a("s_cbranch_scc1 L12_B_noflag")
    a("s_lshl_b32 s30, s25, 4")
    a("s_add_u32 s30, s30, s24")
    a("s_lshl_b32 s30, s30, 7")
    a(f"s_add_u32 s30, s30, {FLAG_OFF}")
    a("v_mov_b32 v216, s30")
    a("v_mov_b32 v217, s42")
    a("s_mov_b64 exec, 1")
    a("buffer_store_dword v217, v216, s[16:19], 0 offen sc1")
    a("s_mov_b64 exec, -1")
    a.label("L12_B_noflag", keep_hist=False)
    a.drain(8)
    PQA, PQB = 160, 180
    dual_softmax(a, pa, TT, [PQA + i for i in range(18)], MI)
    dual_softmax(a, pb, TT, [PQB + i for i in range(18)], MI)
    for R in (PQA, PQB):
        a(f"v_mov_b32 v{R+18}, 0")
        a(f"v_mov_b32 v{R+19}, 0")
    a("v_lshrrev_b32 v216, 5, v255")
    a("v_bfe_u32 v217, v255, 2, 1")
    a("v_bfe_u32 v218, v255, 3, 2")
    a("v_and_b32 v219, 3, v255")
    a("v_mul_u32_u24 v220, 3072, v216")
    a(f"v_add_u32 v220, {FI}, v220")
    a(f"v_mov_b32 v221, {ZERO}")
    a("v_cmp_eq_u32 s[32:33], v216, v217")
    a("v_lshl_add_u32 v222, v218, 2, v219")
    a("v_mul_u32_u24 v222, 80, v222")
    a("v_add_u32 v222, v222, v220")
    a("v_cndmask_b32 v250, v221, v222, s[32:33]")
    a("v_cmp_gt_u32 vcc, 3, v219")
    a("s_and_b64 s[32:33], s[32:33], vcc")
    a("v_mul_u32_u24 v222, 80, v219")
    a("v_add_u32 v222, v222, v220")
    for which in range(2):
        a(f"v_cmp_eq_u32 vcc, {which}, v218")
        a("s_and_b64 vcc, vcc, s[32:33]")
        a(f"v_add_u32 v223, {16*80 + 1536*which}, v222")
        a(f"v_cndmask_b32 v{251+which}, v221, v223, vcc")
    a("v_and_b32 v216, 31, v255")
    a("s_lshl_b32 s30, s28, 5")
    a("v_add_u32 v216, s30, v216")
    a("v_mul_u32_u24 v253, 144, v216")
    a("v_lshrrev_b32 v217, 5, v255")
    a("v_mul_u32_u24 v217, 72, v217")
    a(f"s_mov_b32 s30, {OST}")
    a("v_add3_u32 v253, v253, v217, s30")
    a("v_lshlrev_b32 v248, 4, v255")
    a("s_mul_i32 s31, s28, 4608")
    a("s_add_u32 s30, s30, s31")
    a("v_add_u32 v249, s30, v248")
    a("s_mul_i32 s30, s25, 294912")
    a("s_mul_i32 s32, s24, 18432")
    a("s_add_u32 s30, s30, s32")
    a("s_add_u32 s30, s30, s31")
    a(f"s_add_u32 s30, s30, {O_OFF}")
    srd_off(a, 20, 58, 30, 4608)
    st(5)
    a("s_barrier")
    st(6)
    FA, FB = 0, 112
    for s in range(5):
        a(f"ds_read_b128 {vr(FA+4*s,4)}, v250 offset:{16*s}")
    for s in range(5):
        a(f"ds_read_b128 {vr(FA+20+4*s,4)}, v251 offset:{16*s}")
    for s in range(5):
        a(f"ds_read_b128 {vr(FB+20+4*s,4)}, v252 offset:{16*s}")
    a("s_waitcnt lgkmcnt(10)")
    for s in range(5):
        a(f"{MF32} {vr(TA,16)}, {vr(FA+4*s,4)}, {vr(PQA+4*s,4)}, {'0' if s == 0 else vr(TA,16)}")
    for s in range(5):
        a(f"ds_read_b128 {vr(FB+4*s,4)}, v250 offset:{1536 + 16*s}")
    a("s_waitcnt lgkmcnt(10)")
    for s in range(5):
        a(f"{MF32} {vr(TR,16)}, {vr(FA+20+4*s,4)}, {vr(PQA+4*s,4)}, {'0' if s == 0 else vr(TR,16)}")
    a("s_waitcnt lgkmcnt(5)")
    for s in range(5):
        a(f"{MF32} {vr(TR,16)}, {vr(FB+20+4*s,4)}, {vr(PQB+4*s,4)}, {vr(TR,16)}")
    a("s_waitcnt lgkmcnt(0)")
    for s in range(5):
        a(f"{MF32} {vr(TB,16)}, {vr(FB+4*s,4)}, {vr(PQB+4*s,4)}, {'0' if s == 0 else vr(TB,16)}")
    OD = 200
    for which, p in enumerate((pa, pb)):
        den = TR + 2 + 4 * which
        a(f"v_add_f32 v{MI}, {hex(f2u(1e-6))}, v{den}")
        a(f"v_rcp_f32 v{MI}, v{MI}")
        a(f"v_mul_f32 v{MI}, v{MI}, v{GM}")
        for r in p:
            a(f"v_pk_mul_f32 {vr(r,2)}, {vr(r,2)}, {vr(MI,2)} op_sel_hi:[1,0]")
        for i, r in enumerate(p):
            a(f"v_cvt_pk_bf16_f32 v{OD+9*which+i}, v{r}, v{r+1}")
    for i in range(9):
        a(f"ds_write_b64 v253, {vr(OD+2*i,2)} offset:{8*i}")
    a("s_waitcnt lgkmcnt(0)")
    for i in range(5):
        a(f"ds_read_b128 {vr(4*i,4)}, v249 offset:{1024*i}")
    a("s_mov_b32 s30, 4096")
    for i in range(5):
        a(f"s_waitcnt lgkmcnt({4-i})")
        so = "0" if i < 4 else "s30"
        a(f"buffer_store_dwordx4 {vr(4*i,4)}, v248, s[20:23], {so} offen offset:{(1024*i)%4096} {cfg.o_flags}")
    st(7)
    st.flush(28, 16)
    a("s_endpgm")
    nbarB = a.barriers

    a.label("L12_loader", keep_hist=False)
    a.barriers = 0
    a("s_cmp_lg_u32 s2, 0")
    a("s_cbranch_scc1 L12_nononce")
    a("s_cmp_lg_u32 s28, 4")
    a("s_cbranch_scc1 L12_nononce")
    a("s_memrealtime s[30:31]")
    a("v_mov_b32 v1, 0")
    a("s_waitcnt lgkmcnt(0)")
    a("s_or_b32 s30, s30, 1")
    a("v_mov_b32 v2, s30")
    a("s_mov_b64 exec, 1")
    a("global_store_dword v1, v2, s[56:57] sc1")
    a("s_mov_b64 exec, -1")
    a.label("L12_nononce", keep_hist=False)
    a(f"s_mul_i32 s74, s24, {cfg.stag_a}")
    a(f"s_mul_i32 s30, s25, {cfg.stag_b}")
    a("s_add_u32 s74, s74, s30")
    a("s_mul_i32 s30, s74, 7282")
    a("s_lshr_b32 s30, s30, 16")
    a("s_mul_i32 s30, s30, 9")
    a("s_sub_u32 s74, s74, s30")
    a("s_mov_b32 s79, s74")
    a("s_lshl_b32 s77, s29, 12")
    a("s_mul_i32 s78, s29, 7168")
    a(f"s_add_u32 s78, s78, {WOFF}")
    a("v_lshrrev_b32 v1, 3, v255")
    a("s_lshl_b32 s30, s24, 7")
    a("s_lshl_b32 s31, s29, 5")
    a("s_add_u32 s30, s30, s31")
    a("v_add_u32 v1, s30, v1")
    a("v_mul_u32_u24 v1, 1152, v1")
    a("v_lshrrev_b32 v2, 4, v255")
    a("v_xor_b32 v2, v2, v255")
    a("v_and_b32 v2, 7, v2")
    a("v_xor_b32 v3, 4, v2")
    a("v_lshl_add_u32 v10, v2, 4, v1")
    a("v_lshl_add_u32 v11, v3, 4, v1")
    a(f"v_add_u32 v11, {9216}, v11")
    a(f"v_add_u32 v12, {2*9216}, v10")
    a(f"v_add_u32 v13, {2*9216}, v11")

    def issue_x(slot):
        a("s_lshl_b32 s75, s74, 7")
        for j in range(4):
            a(f"s_add_u32 m0, s77, {slot*SLOT + j*1024}")
            a(f"buffer_load_dwordx4 v{10+j}, s[8:11], s75 offen lds")

    def issue_w(slot):
        a(f"s_mul_i32 s76, s74, {64*3456}")
        for j in range(7):
            a(f"s_add_u32 m0, s78, {slot*SLOT + j*1024}")
            a(f"s_mov_b64 exec, s[{60+2*j}:{61+2*j}]")
            a(f"buffer_load_dwordx4 v{14+j}, s[12:15], s76 offen lds")
        a("s_mov_b64 exec, -1")

    def next_chunk():
        a("s_add_u32 s74, s74, 1")
        a("s_cmp_eq_u32 s74, 9")
        a("s_cselect_b32 s74, 0, s74")

    issue_x(0)
    a("s_mul_i32 s30, s29, 448")
    a("s_mul_i32 s31, s27, 144")
    for j in range(7):
        a(f"s_add_u32 s32, s30, {64*j}")
        a("v_add_u32 v1, s32, v255")
        a("v_mul_u32_u24 v2, 2341, v1")
        a("v_lshrrev_b32 v2, 16, v2")
        a("v_mul_u32_u24 v3, 28, v2")
        a("v_sub_u32 v3, v1, v3")
        a("v_lshrrev_b32 v4, 3, v3")
        a("v_mul_u32_u24 v4, 1152, v4")
        a("v_bfe_u32 v5, v3, 2, 1")
        a("v_lshl_add_u32 v4, v5, 5, v4")
        a("v_and_b32 v5, 1, v3")
        a("v_lshl_add_u32 v4, v5, 4, v4")
        a("v_bfe_u32 v5, v3, 1, 1")
        a("v_mul_u32_u24 v5, 80, v5")
        a("v_add_u32 v4, v4, v5")
        a("v_and_b32 v5, 3, v3")
        a("v_mul_u32_u24 v5, 1152, v5")
        a("v_add_u32 v5, 64, v5")
        a("v_cmp_le_u32 vcc, 24, v3")
        a(f"v_cmp_ne_u32 s[{60+2*j}:{61+2*j}], 27, v3")
        a("v_mul_u32_u24 v2, 3456, v2")
        a("v_cndmask_b32 v4, v4, v5, vcc")
        a(f"v_add3_u32 v{14+j}, v2, v4, s31")
    issue_w(0)
    a("v_lshlrev_b32 v1, 1, v255")
    for i in range(9):
        a("s_lshl_b32 s30, s79, 7")
        a(f"buffer_load_ushort v{21+i}, v1, s[20:23], s30 offen")
        a("s_add_u32 s79, s79, 1")
        a("s_cmp_eq_u32 s79, 9")
        a("s_cselect_b32 s79, 0, s79")
    a("v_mul_u32_u24 v30, 448, v255")
    a(f"v_add_u32 v30, {WOFF + 432}, v30")
    a(f"v_add_u32 v31, {2*SLOT}, v30")
    a("s_cmp_eq_u32 s26, 0")
    a("s_cbranch_scc1 L12_nophi")
    srd(a, 20, 50, 32 * 648)
    a("s_mul_i32 s31, s27, 2592")
    for i in range(4):
        a(f"s_lshl_b32 s30, s29, 8")
        a(f"s_add_u32 s30, s30, {64*i}")
        a("v_add_u32 v1, s30, v255")
        a("v_mul_u32_u24 v2, 1093, v1")
        a("v_lshrrev_b32 v2, 18, v2")
        a("v_mul_u32_u24 v3, 240, v2")
        a("v_sub_u32 v3, v1, v3")
        a("v_mul_u32_u24 v4, 205, v3")
        a("v_lshrrev_b32 v4, 11, v4")
        a("v_mul_u32_u24 v5, 10, v4")
        a("v_sub_u32 v5, v3, v5")
        a("v_cmp_gt_u32 vcc, 18, v4")
        a("v_cmp_gt_u32 s[32:33], 9, v5")
        a("s_and_b64 vcc, vcc, s[32:33]")
        a("v_cmp_gt_u32 s[32:33], 4, v2")
        a("s_and_b64 vcc, vcc, s[32:33]")
        a("v_mul_u32_u24 v2, 648, v2")
        a("v_mul_u32_u24 v4, 36, v4")
        a("v_lshl_add_u32 v4, v5, 2, v4")
        a("v_add3_u32 v2, v2, v4, s31")
        a("v_mov_b32 v3, 0x7ffffff0")
        a("v_cndmask_b32 v2, v3, v2, vcc")
        a("s_lshl_b32 s30, s30, 2")
        a(f"s_add_u32 m0, s30, {PHI}")
        a("buffer_load_dword v2, s[20:23], 0 offen lds")
    a("v_mov_b32 v2, 0")
    a("v_mov_b32 v3, 0")
    a("v_lshlrev_b32 v1, 3, v255")
    a("s_lshl_b32 s30, s29, 9")
    a(f"s_add_u32 s30, s30, {ZERO}")
    a("v_add_u32 v1, s30, v1")
    a("ds_write_b64 v1, v[2:3]")
    a.label("L12_nophi", keep_hist=False)
    next_chunk()
    issue_x(1)
    issue_w(1)
    next_chunk()
    issue_x(2)
    issue_w(2)
    a("s_waitcnt vmcnt(22)")
    a("ds_write_b16 v30, v21")
    a(f"ds_write_b16 v30, v22 offset:{SLOT}")
    a("ds_write_b16 v31, v23")
    a("s_waitcnt lgkmcnt(0)")
    a("s_barrier")
    for c in range(1, 9):
        cnt = 22 - 11 if c == 1 else 11
        if c == 8:
            cnt = 0
        if c == 7:
            cnt = 12
        a(f"s_waitcnt vmcnt({cnt}) lgkmcnt(0)")
        a("s_barrier")
        if c + 2 <= 8:
            slot = (c + 2) % 3
            next_chunk()
            issue_x(slot)
            issue_w(slot)
            if slot == 2:
                a(f"ds_write_b16 v31, v{21+c+2}")
            else:
                a(f"ds_write_b16 v30, v{21+c+2} offset:{slot*SLOT}")
            if c + 2 == 8:
                a("v_mov_b32 v1, 0")
                a("global_load_dword v32, v1, s[56:57] sc1")
    a(f"s_mov_b32 s30, {POLL_MAX}")
    a.label("L12_nonce_poll", keep_hist=False)
    a("v_cmp_ne_u32 vcc, 0, v32")
    a("s_cbranch_vccnz L12_nonce_ok")
    a("s_sleep 2")
    a("global_load_dword v32, v1, s[56:57] sc1")
    a("s_waitcnt vmcnt(0)")
    a("s_sub_u32 s30, s30, 1")
    a("s_cmp_lg_u32 s30, 0")
    a("s_cbranch_scc1 L12_nonce_poll")
    a.label("L12_nonce_ok", keep_hist=False)
    a("s_barrier")
    st(2)
    a(f"v_mov_b32 v1, {NONCE}")
    a("ds_write_b32 v1, v32")
    a("v_readfirstlane_b32 s42, v32")
    a("s_waitcnt lgkmcnt(0)")
    a("s_barrier")
    assert a.barriers == barA + 1, (a.barriers, barA)
    a("s_cmp_eq_u32 s26, 0")
    a("s_cbranch_scc1 L12_A_common")
    a("s_barrier")
    st(4)
    a("s_lshl_b32 s30, s25, 11")
    a(f"s_add_u32 s30, s30, {FLAG_OFF}")
    a("v_lshlrev_b32 v1, 7, v255")
    a("v_add_u32 v1, s30, v1")
    a("s_mov_b64 exec, 0xffff")
    poll(a, "B", 1, 2, 42, 30)
    a("s_mov_b64 exec, -1")
    st(5)
    a("v_lshlrev_b32 v1, 4, v255")
    a("s_lshl_b32 s30, s27, 6")
    a("s_add_u32 s30, s30, s29")
    a("s_mul_i32 s30, s30, 1536")
    a(f"s_add_u32 s30, s30, {PART_OFF}")
    for rnd in range(2):
        if rnd == 1:
            a("s_mov_b64 exec, 0x7fffffff")
        for p in range(16):
            a(f"s_add_u32 s31, s30, {p*6144}")
            a(f"buffer_load_dwordx4 {vr(32+64*rnd+4*p,4)}, v1, s[16:19], s31 offen offset:{1024*rnd} sc1")
    a("s_mov_b64 exec, -1")
    a("s_mul_i32 s30, s29, 1536")
    a(f"s_add_u32 s30, s30, {FI}")
    a("v_add_u32 v2, s30, v1")
    a("s_mov_b32 s32, 0xffff0000")
    for rnd in range(2):
        ac = 160 + 8 * rnd
        for p in range(16):
            a(f"s_waitcnt vmcnt({31 - 16*rnd - p})")
            for i in range(4):
                r = 32 + 64 * rnd + 4 * p + i
                if p == 0:
                    a(f"v_lshlrev_b32 v{ac+2*i}, 16, v{r}")
                    a(f"v_and_b32 v{ac+2*i+1}, s32, v{r}")
                else:
                    a(f"v_lshlrev_b32 v{176+2*i}, 16, v{r}")
                    a(f"v_and_b32 v{177+2*i}, s32, v{r}")
            if p > 0:
                for i in range(4):
                    a(f"v_pk_add_f32 {vr(ac+2*i,2)}, {vr(ac+2*i,2)}, {vr(176+2*i,2)}")
        for i in range(4):
            a(f"v_cvt_pk_bf16_f32 v{184+4*rnd+i}, v{ac+2*i}, v{ac+2*i+1}")
        if rnd == 1:
            a("s_mov_b64 exec, 0x7fffffff")
        a(f"ds_write_b128 v2, {vr(184+4*rnd,4)} offset:{1024*rnd}")
    a("s_mov_b64 exec, -1")
    a("s_waitcnt lgkmcnt(0)")
    st(6)
    a("s_barrier")
    assert a.barriers == nbarB, (a.barriers, nbarB)
    assert nbarA == barA + 5
    st.flush(28, 16)
    a.label("L12_end")
    a("s_endpgm")
    return a


OPART = 24576
LDS3 = 3 * SLOT


def gen_k3(cfg):
    a = Asm()
    st = Stamps(a, cfg.profile, 1)
    a("s_cmp_ge_u32 s2, 240")
    a("s_cbranch_scc1 L3_end")
    a("s_and_b32 s30, s2, 7")
    a("s_mul_i32 s30, s30, 30")
    a("s_lshr_b32 s31, s2, 3")
    a("s_add_u32 s30, s30, s31")
    a("s_cmp_ge_u32 s30, 234")
    a("s_cbranch_scc1 L3_end")
    a("s_load_dwordx2 s[44:45], s[0:1], 16")
    a("s_load_dwordx2 s[46:47], s[0:1], 48")
    a("s_load_dwordx2 s[48:49], s[0:1], 64")
    a("s_load_dwordx2 s[58:59], s[0:1], 80")
    st.init()
    a("s_mul_i32 s24, s30, 7282")
    a("s_lshr_b32 s24, s24, 16")
    a("s_mul_i32 s31, s24, 9")
    a("s_sub_u32 s25, s30, s31")
    a("v_lshrrev_b32 v1, 6, v0")
    a("v_and_b32 v127, 63, v0")
    a("v_readfirstlane_b32 s28, v1")
    a("s_and_b32 s29, s28, 3")
    a("s_waitcnt lgkmcnt(0)")
    st(0)
    srd(a, 16, 58, WS_BYTES)
    srd(a, 8, 44, 576 * 1152)
    srd(a, 12, 46, 576 * 1152)
    srd(a, 20, 48, 2048 * 1152)
    a("s_cmp_ge_u32 s28, 4")
    a("s_cbranch_scc1 L3_loader")
    OA, WA = 120, 121
    a("v_and_b32 v1, 31, v127")
    a("v_lshrrev_b32 v2, 5, v127")
    a("v_mul_u32_u24 v1, 144, v1")
    a("v_mul_u32_u24 v3, 11520, v2")
    a(f"v_add_u32 v{OA}, v1, v3")
    a("v_bfe_u32 v1, v127, 2, 2")
    a("v_mul_u32_u24 v3, 72, v2")
    a("v_add_u32 v3, v3, v1")
    a("v_lshlrev_b32 v3, 7, v3")
    a("v_lshrrev_b32 v1, 1, v1")
    a("s_and_b32 s30, s28, 1")
    a("v_xor_b32 v1, s30, v1")
    a("v_lshl_add_u32 v3, v1, 6, v3")
    a("v_bfe_u32 v1, v127, 4, 1")
    a("v_lshl_add_u32 v3, v1, 5, v3")
    a("v_and_b32 v1, 3, v127")
    a("v_lshl_add_u32 v3, v1, 3, v3")
    a(f"v_add_u32 v{WA}, {OPART}, v3")
    a(f"v_add_u32 v{OA+2}, {2*SLOT}, v{OA}")
    a(f"v_add_u32 v{WA+2}, {2*SLOT}, v{WA}")
    a(f"v_add_u32 v{WA+3}, {SLOT}, v{WA}")
    for i in range(48):
        a(f"v_mov_b32 v{i}, 0")
    FR = (48, 64)

    def reads(c, s, buf):
        slot = c % 3
        oa = OA + 2 if slot == 2 else OA
        ob = SLOT if slot == 1 else 0
        wa = (WA, WA + 3, WA + 2)[slot]
        L = [f"ds_read_b64_tr_b16 {vr(FR[buf]+12+2*u,2)}, v{wa} offset:{(8*s+4*u)*128}" for u in range(2)]
        L += [f"ds_read_b128 {vr(FR[buf]+4*i,4)}, v{oa} offset:{ob + 4608*i + 16*s}" for i in range(3)]
        return L

    def mfm(buf):
        return [f"{MF32} {vr(16*i,16)}, {vr(FR[buf]+12,4)}, {vr(FR[buf]+4*i,4)}, {vr(16*i,16)}" for i in range(3)]

    a("s_cmp_ge_u32 s28, 2")
    a("s_cbranch_scc1 L3_sp1")
    for sp in range(2):
        if sp == 1:
            a.label("L3_sp1", keep_hist=False)
            a.barriers = 0
        seq = [(c, s) for c in range(8) for s in range(9) if (s + c + sp) % 2 == 0]
        a("s_barrier")
        if sp == 0:
            st(1)
        for l in reads(*seq[0], 0):
            a(l)
        for i, (c, s) in enumerate(seq):
            buf = i & 1
            a("s_waitcnt lgkmcnt(0)")
            rd = []
            if i + 1 < len(seq):
                if seq[i + 1][0] != c:
                    a("s_barrier")
                rd = reads(*seq[i + 1], buf ^ 1)
            else:
                a("s_barrier")
            ms = mfm(buf)
            k = 0
            for m in ms:
                a(m)
                for _ in range(2):
                    if k < len(rd):
                        a(rd[k])
                        k += 1
        st(2)
        a("v_lshlrev_b32 v100, 4, v127")
        a("s_and_b32 s30, s28, 1")
        a("s_mul_i32 s30, s30, 12288")
        a("v_add_u32 v100, s30, v100")
        if sp == 1:
            for i in range(12):
                a(f"ds_write_b128 v100, {vr(4*i,4)} offset:{1024*i}")
            a("s_waitcnt lgkmcnt(0)")
            a("s_barrier")
            a("s_barrier")
            a("s_branch L3_store")
        else:
            a("v_and_b32 v101, 31, v127")
            a("v_mul_u32_u24 v101, 144, v101")
            a("v_lshrrev_b32 v102, 5, v127")
            a("v_lshl_add_u32 v101, v102, 3, v101")
            a("s_and_b32 s30, s28, 1")
            a("s_lshl_b32 s30, s30, 6")
            a(f"s_add_u32 s30, s30, {OPART}")
            a("v_add_u32 v101, s30, v101")
            a("s_barrier")
            for i in range(12):
                a(f"ds_read_b128 {vr(48+4*i,4)}, v100 offset:{1024*i}")
            for i in range(12):
                a(f"s_waitcnt lgkmcnt({11-i})")
                a(f"v_pk_add_f32 {vr(4*i,2)}, {vr(4*i,2)}, {vr(48+4*i,2)}")
                a(f"v_pk_add_f32 {vr(4*i+2,2)}, {vr(4*i+2,2)}, {vr(50+4*i,2)}")
            for i in range(12):
                a(f"v_cvt_pk_bf16_f32 v{104+2*(i%4)}, v{4*i}, v{4*i+1}")
                a(f"v_cvt_pk_bf16_f32 v{105+2*(i%4)}, v{4*i+2}, v{4*i+3}")
                a(f"ds_write_b64 v101, {vr(104+2*(i%4),2)} offset:{(i//4)*4608 + 16*(i%4)}")
            a("s_waitcnt lgkmcnt(0)")
            a("s_barrier")
            a("s_branch L3_store")
        nb = a.barriers
        assert nb == 11, nb
    a.label("L3_loader", keep_hist=False)
    a.barriers = 0
    a("s_mul_i32 s30, s29, 384")
    a("s_mul_i32 s31, s24, 11520")
    a(f"s_add_u32 s31, s31, {O_OFF}")
    a("v_mov_b32 v5, 0x7ffffff0")
    for j in range(6):
        a(f"s_add_u32 s32, s30, {64*j}")
        a("v_add_u32 v1, s32, v127")
        a("v_lshlrev_b32 v2, 4, v1")
        a(f"v_add_u32 v3, {294912 - 11520}, v2")
        a("v_cmp_le_u32 vcc, 720, v1")
        a("v_cndmask_b32 v2, v2, v3, vcc")
        a("v_add_u32 v2, s31, v2")
        a("v_cmp_gt_u32 vcc, 1440, v1")
        a(f"v_cndmask_b32 v{10+j}, v5, v2, vcc")
    a("s_mul_i32 s77, s29, 6144")
    a("s_mul_i32 s78, s29, 5120")
    a(f"s_add_u32 s78, s78, {OPART}")

    def issue_o(c):
        a(f"s_mov_b32 s75, {c*589824}")
        for j in range(6):
            a(f"s_add_u32 m0, s77, {(c%3)*SLOT + j*1024}")
            a(f"buffer_load_dwordx4 v{10+j}, s[16:19], s75 offen lds")

    def issue_w(c):
        a(f"s_mov_b32 s76, {(c%4)*144*1152}")
        for j in range(5):
            a(f"s_add_u32 m0, s78, {(c%3)*SLOT + j*1024}")
            a(f"buffer_load_dwordx4 v{16+j}, {'s[8:11]' if c < 4 else 's[12:15]'}, s76 offen lds")

    issue_o(0)
    a("s_mul_i32 s30, s29, 40")
    a("s_lshl_b32 s31, s25, 7")
    for j in range(5):
        a("v_lshrrev_b32 v1, 3, v127")
        a(f"s_add_u32 s32, s30, {8*j}")
        a("v_add_u32 v1, s32, v1")
        a("v_bfe_u32 v2, v1, 1, 1")
        a("v_lshlrev_b32 v2, 2, v2")
        a("v_xor_b32 v2, v2, v127")
        a("v_and_b32 v2, 7, v2")
        a("v_mul_u32_u24 v3, 1152, v1")
        a("v_lshl_add_u32 v3, v2, 4, v3")
        a("v_add_u32 v3, s31, v3")
        a("v_cmp_gt_u32 vcc, 144, v1")
        a(f"v_cndmask_b32 v{16+j}, v5, v3, vcc")
    issue_w(0)
    for c in (1, 2):
        issue_o(c)
        issue_w(c)
    for c in range(8):
        cnt = 22 if c == 0 else (11 if c < 7 else 0)
        a(f"s_waitcnt vmcnt({cnt})")
        a("s_barrier")
        if c >= 1 and c + 2 <= 7:
            issue_o(c + 2)
            issue_w(c + 2)
    a("s_barrier")
    a("s_barrier")
    a("s_barrier")
    assert a.barriers == 11
    a.label("L3_store", keep_hist=False)
    st(3)
    a("s_lshl_b32 s30, s28, 3")
    a("v_lshrrev_b32 v1, 3, v127")
    a("v_add_u32 v1, s30, v1")
    a("v_and_b32 v2, 7, v127")
    a("v_lshlrev_b32 v2, 4, v2")
    a("v_mul_u32_u24 v3, 144, v1")
    a(f"s_mov_b32 s30, {OPART}")
    a("v_add3_u32 v3, v3, v2, s30")
    a("ds_read_b128 v[8:11], v3")
    a(f"ds_read_b128 v[12:15], v3 offset:{64*144}")
    a("s_mul_i32 s30, s24, 80")
    a("v_add_u32 v4, s30, v1")
    a("v_mul_u32_u24 v4, 1152, v4")
    a("s_lshl_b32 s30, s25, 7")
    a("v_add3_u32 v4, v4, v2, s30")
    a(f"s_mov_b32 s31, {64*1152}")
    a("s_waitcnt lgkmcnt(1)")
    a(f"buffer_store_dwordx4 v[8:11], v4, s[20:23], 0 offen {cfg.out_flags}")
    a("s_cmp_ge_u32 s28, 2")
    a("s_cbranch_scc1 L3_fin")
    a("s_waitcnt lgkmcnt(0)")
    a(f"buffer_store_dwordx4 v[12:15], v4, s[20:23], s31 offen {cfg.out_flags}")
    a.label("L3_fin", keep_hist=False)
    st(4)
    st.flush(28, 16)
    a.label("L3_end")
    a("s_endpgm")
    return a


def kd(name, vgpr):
    return f""".amdhsa_kernel {name}
  .amdhsa_next_free_vgpr {vgpr}
  .amdhsa_next_free_sgpr 102
  .amdhsa_accum_offset {vgpr}
  .amdhsa_group_segment_fixed_size 0
  .amdhsa_kernarg_size 88
  .amdhsa_user_sgpr_count 2
  .amdhsa_user_sgpr_kernarg_segment_ptr 1
  .amdhsa_system_sgpr_workgroup_id_x 1
.end_amdhsa_kernel
"""


def generate(cfg):
    k12 = gen_k12(cfg)
    k3 = gen_k3(cfg)
    out = []
    out.append(f"; @launch kernel=qkv_attn_kernel grid=(256,1,1) block=(512,1,1) lds={LDS12}")
    out.append(f"; @launch kernel=outproj_kernel grid=(240,1,1) block=(512,1,1) lds={LDS3}")
    out.append('.amdgcn_target "amdgcn-amd-amdhsa--gfx950"')
    out.append(".text")
    for n, k in (("qkv_attn_kernel", k12), ("outproj_kernel", k3)):
        out.append(f".globl {n}")
        out.append(".p2align 8")
        out.append(f".type {n},@function")
        out.append(f"{n}:")
        out.append(k.text())
    out.append('.section .rodata,"a"')
    out.append(".p2align 6")
    out.append(kd("qkv_attn_kernel", 256))
    out.append(".p2align 6")
    out.append(kd("outproj_kernel", 128))
    sys.stderr.write(f"k12: {k12.count} instr, {k12.nops} nop states; k3: {k3.count} instr, {k3.nops} nop states\n")
    return "\n".join(out)


if __name__ == "__main__":
    cfg = Cfg()
    path = f"cdna_kernels/{NAME}.s"
    for arg in sys.argv[1:]:
        if arg.startswith("-o="):
            path = arg[3:]
        else:
            k, v = arg.split("=", 1)
            cur = getattr(cfg, k)
            setattr(cfg, k, (v == "1") if isinstance(cur, bool) else type(cur)(v))
    open(path, "w").write(generate(cfg))
```
